```python
import torch

def _softmax(x, axis=-1):
    return torch.softmax(x, dim=axis)
def _gelu(x):
    return torch.nn.functional.gelu(x, approximate="tanh")
def _silu(x):
    return torch.nn.functional.silu(x)
def _sigmoid(x):
    return torch.sigmoid(x)
def _layernorm(x, axis=-1, eps=1e-5):
    m = x.mean(dim=axis, keepdim=True)
    v = x.var(dim=axis, keepdim=True, unbiased=False)
    return (x - m) / torch.sqrt(v + eps)
def _scatter_add(tgt, idx, src, axis=0):
    return tgt.clone().index_add_(axis, idx, src)
def _segment_sum(src, seg, n):
    out = torch.zeros((n,) + src.shape[1:], dtype=src.dtype)
    return out.index_add_(0, seg, src)
def _pad(x, pw):
    flat = tuple(v for pair in reversed(pw) for v in pair)
    return torch.nn.functional.pad(x, flat)

kernel_name = 'standalone__rmsnorm__sampling'

def setup_inputs():

    _w = (lambda a: (lambda t: t.to(torch.bfloat16) if t.is_floating_point() else t)(torch.as_tensor(a)))
    B, S, D = 1024, 32, 448
    return {
        "x": _w((lambda *s: torch.randn(*s, dtype=torch.bfloat16) * 0.05)(B, S, D)),
        "g": _w((lambda *s: torch.randn(*s, dtype=torch.bfloat16) * 0.05)(D) + 1.0),
    }

def reference(x, g):
    rms = torch.sqrt((x * x).mean(axis=-1, keepdims=True) + 1e-6)
    return x / rms * g
```

```python
import sys,re
def probe(src, buf, off, stride, n, k=1, warm=True, flags=""):
    ptr={'x':0,'g':8,'out':16,'ws':32}[buf]
    pre=f"""    s_memrealtime s[20:21]
    s_load_dwordx2 s[30:31], s[0:1], {ptr}
    s_load_dwordx2 s[34:35], s[0:1], 24
    s_mov_b32 s36, 0
    v_readfirstlane_b32 s37, v0
    s_waitcnt lgkmcnt(0)
    s_or_b32 s37, s37, s2
    s_cmp_lg_u32 s37, 0
    s_cbranch_scc1 L_wait0
    v_mov_b32 v10, {off}
"""
    if warm:
        pre+=f"""    global_load_dword v11, v10, s[30:31] {flags}
    s_waitcnt vmcnt(0)
"""
    pre+=f"""    s_memrealtime s[26:27]
    s_waitcnt lgkmcnt(0)
"""
    if n>0:
        pre+=f"""    s_mov_b32 s38, {n}
L_chain:
    v_add_u32 v10, {stride}, v10
    global_load_dword v11, v10, s[30:31] {flags}
    s_sub_u32 s38, s38, 1
    s_cmp_lg_u32 s38, 0
    s_waitcnt vmcnt(0)
    s_cbranch_scc1 L_chain
"""
    pre+=f"""    s_memrealtime s[28:29]
    s_waitcnt lgkmcnt(0)
    s_sub_u32 s36, s28, s26
    v_mov_b32 v10, 0
    v_mov_b32 v11, s36
    global_store_dword v10, v11, s[34:35]
    s_mul_i32 s36, s36, {k}
L_wait0:
    s_mov_b32 s24, 200000
L_spin0:
    s_memrealtime s[22:23]
    s_waitcnt lgkmcnt(0)
    s_sub_u32 s22, s22, s20
    s_cmp_ge_u32 s22, 3000
    s_cbranch_scc1 L_go
    s_sleep 8
    s_sub_u32 s24, s24, 1
    s_cmp_lg_u32 s24, 0
    s_cbranch_scc1 L_spin0
L_go:
    s_min_u32 s36, s36, 20000
    s_add_u32 s36, s36, 5000
"""
    s=src.replace("    s_load_dwordx4 s[4:7], s[0:1], 0\n", pre+"    s_load_dwordx4 s[4:7], s[0:1], 0\n")
    s=s.replace("L_end:\n",f"""    s_waitcnt vmcnt(0)
    s_mov_b32 s24, 200000
L_spin:
    s_memrealtime s[22:23]
    s_waitcnt lgkmcnt(0)
    s_sub_u32 s22, s22, s20
    s_cmp_ge_u32 s22, s36
    s_cbranch_scc1 L_end
    s_sleep 2
    s_sub_u32 s24, s24, 1
    s_cmp_lg_u32 s24, 0
    s_cbranch_scc1 L_spin
L_end:
""")
    s=re.sub(r"next_free_sgpr \d+","next_free_sgpr 48",s)
    return s
if __name__=="__main__":
    src=open('var/st_sc01.s').read()
    M=1<<20
    open('var/p_x0.s','w').write(probe(src,'x',256,4224,32))
    open('var/p_x26.s','w').write(probe(src,'x',26*M+256,4224,32))
    open('var/p_out0.s','w').write(probe(src,'out',256,4224,32))
    open('var/p_xpg.s','w').write(probe(src,'x',256,2*M,13))
    open('var/p_wsend.s','w').write(probe(src,'ws',254*M+256,4224,32))
    open('var/p_base.s','w').write(probe(src,'x',256,4224,0))
```

```python
import sys, argparse

HEADER = """; Kernarg layout for this problem (40 bytes, ptrs only, base s[0:1]):
; @launch grid=({grid},1,1) block=({block},1,1) lds={lds}
.amdgcn_target "amdgcn-amd-amdhsa--gfx950"
.text
.globl standalone__rmsnorm__sampling_kernel
.p2align 8
.type standalone__rmsnorm__sampling_kernel,@function
standalone__rmsnorm__sampling_kernel:
"""
FOOTER = """.section .rodata,"a"
.p2align 6
.amdhsa_kernel standalone__rmsnorm__sampling_kernel
  .amdhsa_next_free_vgpr {vgpr}
  .amdhsa_next_free_sgpr {sgpr}
  .amdhsa_accum_offset {accum}
  .amdhsa_group_segment_fixed_size 0
  .amdhsa_kernarg_size 40
  .amdhsa_user_sgpr_count 2
  .amdhsa_user_sgpr_kernarg_segment_ptr 1
  .amdhsa_system_sgpr_workgroup_id_x 1
  .amdhsa_float_denorm_mode_32 3
.end_amdhsa_kernel
"""

ROWS = 32768
ROWB = 896

def gen(a):
    L = []
    e = L.append
    waves = a.block // 64
    G = a.groups
    rows_per_block = waves * 8 * G
    grid = ROWS // rows_per_block
    assert grid * rows_per_block == ROWS
    ld = (" " + a.ld) if a.ld else ""
    st = (" " + a.st) if a.st else ""
    vOFF, vGOFF = 1, 2
    xb = 4
    gb = xb + 28 * G
    tb = gb + 28
    if a.stamps:
        e("    s_memrealtime s[20:21]")
        e("    s_load_dwordx2 s[30:31], s[0:1], 32")
    e("    s_load_dwordx4 s[4:7], s[0:1], 0")
    e("    s_load_dwordx2 s[8:9], s[0:1], 16")
    e(f"    s_cmp_ge_u32 s2, {grid}")
    e("    s_cbranch_scc1 L_end")
    if a.xmask != 0xff or a.ncu != 32:
        e("    s_getreg_b32 s13, hwreg(HW_REG_XCC_ID, 0, 4)")
        e(f"    s_lshr_b32 s13, {a.xmask}, s13")
        e("    s_lshr_b32 s14, s2, 3")
        e("    s_and_b32 s14, s14, 31")
        e(f"    s_cmp_lt_u32 s14, {a.ncu}")
        e("    s_cselect_b32 s13, s13, 0")
        e("    s_and_b32 s13, s13, 1")
        e("    s_cbranch_scc1 L_work")
        e("    s_waitcnt lgkmcnt(0)")
        e("    s_mov_b64 s[22:23], s[20:21]")
        e("    s_mov_b64 s[24:25], s[20:21]")
        e("    s_branch L_stamp")
        e("L_work:")
    e("    v_lshrrev_b32 v1, 3, v0")
    e("    v_and_b32 v2, 7, v0")
    e(f"    s_mul_i32 s3, s2, {rows_per_block*ROWB}")
    e("    v_lshlrev_b32 v2, 4, v2")
    if G == 1:
        e(f"    v_mul_u32_u24 v1, {ROWB}, v1")
    else:
        e("    v_lshrrev_b32 v3, 6, v0")
        e("    v_and_b32 v1, 7, v1")
        e(f"    v_mul_u32_u24 v3, {8*G*ROWB}, v3")
        e(f"    v_mul_u32_u24 v1, {ROWB}, v1")
        e("    v_add_u32 v1, v3, v1")
    e("    v_add3_u32 v1, v1, v2, s3")
    vb = [1] + [tb + 8 + k for k in range(G - 1)]
    for k in range(1, G):
        e(f"    v_add_u32 v{vb[k]}, {k*8*ROWB}, v1")
    e("    s_waitcnt lgkmcnt(0)")
    def xload(k):
        for j in range(7):
            r = xb + 28 * k + 4 * j
            e(f"    global_load_dwordx4 v[{r}:{r+3}], v{vb[k]}, s[4:5] offset:{128*j}{ld}")
    if a.kind in ("read", "write", "copy", "rw", "rwsplit", "rwcu", "touch", "touchread", "rdx2", "rdlds", "sload", "sloadread", "sload2"):
        return micro(a, L, xb, vb, G, ld, st, grid, waves)
    xload(0)
    for j in range(7):
        r = gb + 4 * j
        e(f"    global_load_dwordx4 v[{r}:{r+3}], v2, s[6:7] offset:{128*j}")
    for k in range(1, G):
        xload(k)
    e("    s_mov_b32 s10, 0x3b124925   ; 1/448")
    e("    s_mov_b32 s11, 0x358637bd   ; 1e-6")
    e("    s_mov_b32 s12, 0xffff0000")
    acc0, acc1, t0, t1, t2, t3, inv = tb, tb+1, tb+2, tb+3, tb+4, tb+5, tb+6
    assert t0 % 2 == 0 and t2 % 2 == 0 and inv % 2 == 0, (t0, t2, inv)
    outstanding_after = lambda k: None
    nst = 0
    for k in range(G):
        total_loads = 7 + 7 * G
        e(f"    v_mov_b32 v{acc0}, 0")
        e(f"    v_mov_b32 v{acc1}, 0")
        for j in range(7):
            idx = j if k == 0 else 7 + 7 * k + j
            n = (total_loads - 1 - idx) + nst
            n = min(n, 63)
            e(f"    s_waitcnt vmcnt({n})")
            if a.stamps and k == 0 and j == 0: e("    s_memrealtime s[22:23]")
            if a.stamps and k == G - 1 and j == 6: e("    s_memrealtime s[24:25]")
            r = xb + 28 * k + 4 * j
            for q in range(4):
                e(f"    v_dot2c_f32_bf16 v{acc0 + (q&1)}, v{r+q}, v{r+q}")
        e("    s_nop 2")
        e(f"    v_add_f32 v{acc0}, v{acc0}, v{acc1}")
        e("    s_nop 1")
        e(f"    v_add_f32_dpp v{acc0}, v{acc0}, v{acc0} quad_perm:[1,0,3,2] row_mask:0xf bank_mask:0xf")
        e("    s_nop 1")
        e(f"    v_add_f32_dpp v{acc0}, v{acc0}, v{acc0} quad_perm:[2,3,0,1] row_mask:0xf bank_mask:0xf")
        e("    s_nop 1")
        e(f"    v_add_f32_dpp v{acc0}, v{acc0}, v{acc0} row_half_mirror row_mask:0xf bank_mask:0xf")
        e(f"    v_mul_f32 v{acc0}, s10, v{acc0}")
        if a.mimic:
            e(f"    v_cvt_pk_bf16_f32 v{acc0}, v{acc0}, v{acc0}")
            e(f"    v_and_b32 v{acc0}, s12, v{acc0}")
        e(f"    v_add_f32 v{acc0}, s11, v{acc0}")
        if a.mimic:
            e(f"    v_cvt_pk_bf16_f32 v{acc0}, v{acc0}, v{acc0}")
            e(f"    v_and_b32 v{acc0}, s12, v{acc0}")
            e(f"    v_sqrt_f32 v{acc0}, v{acc0}")
            e("    s_nop 0")
            e(f"    v_cvt_pk_bf16_f32 v{acc0}, v{acc0}, v{acc0}")
            e(f"    v_and_b32 v{acc0}, s12, v{acc0}")
            e(f"    v_rcp_f32 v{inv}, v{acc0}")
        else:
            e(f"    v_rsq_f32 v{inv}, v{acc0}")
        if k == 0:
            n = min(7 * (G - 1), 63)
            e(f"    s_waitcnt vmcnt({n})")
        else:
            e("    s_nop 0")
        for j in range(7):
            r = xb + 28 * k + 4 * j
            g = gb + 4 * j
            for q in range(4):
                e(f"    v_lshlrev_b32 v{t0}, 16, v{r+q}")
                e(f"    v_and_b32 v{t1}, s12, v{r+q}")
                e(f"    v_lshlrev_b32 v{t2}, 16, v{g+q}")
                e(f"    v_and_b32 v{t3}, s12, v{g+q}")
                e(f"    v_pk_mul_f32 v[{t0}:{t1}], v[{t0}:{t1}], v[{inv}:{inv+1}] op_sel_hi:[1,0]")
                if a.mimic >= 2:
                    e(f"    v_cvt_pk_bf16_f32 v{t1}, v{t0}, v{t1}")
                    e(f"    v_lshlrev_b32 v{t0}, 16, v{t1}")
                    e(f"    v_and_b32 v{t1}, s12, v{t1}")
                e(f"    v_pk_mul_f32 v[{t0}:{t1}], v[{t0}:{t1}], v[{t2}:{t3}]")
                e(f"    v_cvt_pk_bf16_f32 v{r+q}, v{t0}, v{t1}")
            e(f"    global_store_dwordx4 v{vb[k]}, v[{r}:{r+3}], s[8:9] offset:{128*j}{st}")
            nst += 1
    nv = tb + 8 + (G - 1)
    return finish(a, L, grid, waves, nv)

def finish(a, L, grid, waves, nv, lds=0):
    e = L.append
    if a.stamps:
        e("L_stamp:")
        e("    s_waitcnt vmcnt(0)")
        e("    s_memrealtime s[26:27]")
        e("    s_getreg_b32 s28, hwreg(HW_REG_HW_ID)")
        e("    s_getreg_b32 s29, hwreg(HW_REG_XCC_ID)")
        e("    v_lshrrev_b32 v1, 6, v0")
        e(f"    s_mul_i32 s3, s2, {waves}")
        e("    v_add_u32 v1, s3, v1")
        e("    v_lshlrev_b32 v1, 5, v1")
        e("    v_and_b32 v2, 63, v0")
        e("    v_cmp_eq_u32 vcc, 0, v2")
        e("    s_waitcnt lgkmcnt(0)")
        e("    v_mov_b32 v4, s20")
        e("    v_mov_b32 v5, s22")
        e("    v_mov_b32 v6, s24")
        e("    v_mov_b32 v7, s26")
        e("    v_mov_b32 v8, s28")
        e("    v_mov_b32 v9, s29")
        e("    s_and_saveexec_b64 s[32:33], vcc")
        e("    global_store_dwordx4 v1, v[4:7], s[30:31]")
        e("    global_store_dwordx2 v1, v[8:9], s[30:31] offset:16")
    e("L_end:")
    e("    s_endpgm")
    body = "\n".join(L) + "\n"
    return HEADER.format(grid=grid, block=a.block, lds=lds) + body + FOOTER.format(vgpr=nv, sgpr=(40 if a.stamps else 16), accum=(nv + 3) // 4 * 4)

def micro(a, L, xb, vb, G, ld, st, grid, waves):
    e = L.append
    nst = 0
    if a.kind in ("touch", "touchread"):
        e("    v_and_b32 v40, 63, v0")
        e("    v_min_u32 v40, 55, v40")
        e("    v_lshlrev_b32 v40, 7, v40")
        e("    v_lshrrev_b32 v41, 6, v0")
        e("    v_mul_u32_u24 v41, 7168, v41")
        e("    v_add3_u32 v40, v40, v41, s3")
        e(f"    global_load_dword v42, v40, s[4:5]{ld}")
        if a.kind == "touch":
            e("    s_memrealtime s[22:23]")
            e("    s_waitcnt vmcnt(0)")
            e("    s_memrealtime s[24:25]")
        else:
            e("    s_waitcnt vmcnt(0)")
            e("    s_memrealtime s[22:23]")
            for j in range(7):
                r = xb + 4 * j
                e(f"    global_load_dwordx4 v[{r}:{r+3}], v{vb[0]}, s[4:5] offset:{128*j}")
            e("    s_waitcnt vmcnt(0)")
            e("    s_memrealtime s[24:25]")
        return finish(a, L, grid, waves, xb + 28 * G + 28 + 8)
    if a.kind == "rdx2":
        e("    v_and_b32 v40, 63, v0")
        e("    v_lshlrev_b32 v40, 3, v40")
        e("    v_lshrrev_b32 v41, 6, v0")
        e("    v_mul_u32_u24 v41, 7168, v41")
        e("    v_add3_u32 v40, v40, v41, s3")
        e("    v_add_u32 v41, 3584, v40")
        for j in range(14):
            r = xb + 2 * j
            e(f"    global_load_dwordx2 v[{r}:{r+1}], v{40 + j//7}, s[4:5] offset:{512*(j%7)}{ld}")
        e("    s_waitcnt vmcnt(13)")
        e("    s_memrealtime s[22:23]")
        e("    s_waitcnt vmcnt(0)")
        e("    s_memrealtime s[24:25]")
        return finish(a, L, grid, waves, xb + 28 * G + 28 + 8)
    if a.kind == "rdlds":
        e("    v_and_b32 v40, 63, v0")
        e("    v_lshlrev_b32 v40, 4, v40")
        e("    v_lshrrev_b32 v41, 6, v0")
        e("    v_mul_u32_u24 v41, 7168, v41")
        e("    v_add3_u32 v40, v40, v41, s3")
        e("    v_readfirstlane_b32 s13, v41")
        for j in range(7):
            e(f"    s_add_u32 m0, s13, {1024*j}")
            e("    s_nop 0")
            e(f"    global_load_lds_dwordx4 v40, s[4:5]{ld}")
            e("    v_add_u32 v40, 1024, v40")
        e("    s_waitcnt vmcnt(6)")
        e("    s_memrealtime s[22:23]")
        e("    s_waitcnt vmcnt(0)")
        e("    s_memrealtime s[24:25]")
        return finish(a, L, grid, waves, xb + 28 * G + 28 + 8, lds=waves*7168)
    if a.kind in ("sload", "sloadread", "sload2"):
        e("    v_lshrrev_b32 v41, 6, v0")
        e("    v_mul_u32_u24 v41, 7168, v41")
        e("    s_nop 0")
        e("    v_readfirstlane_b32 s13, v41")
        e("    s_nop 3")
        e("    s_add_u32 s13, s13, s3")
        e("    s_add_u32 s14, s4, s13")
        e("    s_addc_u32 s15, s5, 0")
        step = 64 if a.kind == "sload2" else 128
        for j in range(7168 // step):
            e(f"    s_load_dword s34, s[14:15], {step*j}")
        e("    s_waitcnt lgkmcnt(0)")
        e("    s_memrealtime s[22:23]")
        if a.kind != "sload":
            for j in range(7):
                r = xb + 4 * j
                e(f"    global_load_dwordx4 v[{r}:{r+3}], v{vb[0]}, s[4:5] offset:{128*j}")
            e("    s_waitcnt vmcnt(0)")
        e("    s_memrealtime s[24:25]")
        return finish(a, L, grid, waves, xb + 28 * G + 28 + 8)
    if a.kind == "rw":
        for j in range(7):
            r = xb + 4 * j
            e(f"    global_load_dwordx4 v[{r}:{r+3}], v{vb[0]}, s[4:5] offset:{128*j}{ld}")
            e(f"    global_store_dwordx4 v{vb[0]}, v[{r+28}:{r+31}], s[8:9] offset:{128*j}{st}")
        e("    s_waitcnt vmcnt(13)")
        e("    s_memrealtime s[22:23]")
        e("    s_waitcnt vmcnt(1)")
        e("    s_memrealtime s[24:25]")
        return finish(a, L, grid, waves, xb + 28 * G + 28 + 8)
    if a.kind in ("rwsplit", "rwcu"):
        assert G == 2
        if a.kind == "rwsplit":
            e("    v_readfirstlane_b32 s13, v0")
            e("    s_nop 3")
            e("    s_lshr_b32 s13, s13, 6")
            e("    s_and_b32 s13, s13, 1")
        else:
            e("    s_lshr_b32 s13, s2, 3")
            e("    s_and_b32 s13, s13, 1")
        e("    s_cmp_eq_u32 s13, 0")
        e("    s_cbranch_scc0 L_wr")
        for k in range(G):
            for j in range(7):
                r = xb + 28 * k + 4 * j
                e(f"    global_load_dwordx4 v[{r}:{r+3}], v{vb[k]}, s[4:5] offset:{128*j}{ld}")
        e("    s_waitcnt vmcnt(13)")
        e("    s_memrealtime s[22:23]")
        e("    s_waitcnt vmcnt(0)")
        e("    s_memrealtime s[24:25]")
        e("    s_branch L_fin")
        e("L_wr:")
        e("    s_memrealtime s[22:23]")
        e("    s_memrealtime s[24:25]")
        for k in range(G):
            for j in range(7):
                r = xb + 28 * k + 4 * j
                e(f"    global_store_dwordx4 v{vb[k]}, v[{r}:{r+3}], s[8:9] offset:{128*j}{st}")
        e("L_fin:")
        return finish(a, L, grid, waves, max(vb) + 1)
    if a.kind != "write":
        for k in range(G):
            for j in range(7):
                r = xb + 28 * k + 4 * j
                e(f"    global_load_dwordx4 v[{r}:{r+3}], v{vb[k]}, s[4:5] offset:{128*j}{ld}")
    if a.stamps and a.kind == "write":
        e("    s_memrealtime s[22:23]")
        e("    s_memrealtime s[24:25]")
    for k in range(G):
        if a.kind != "write":
            if a.stamps and k == 0:
                e(f"    s_waitcnt vmcnt({min(63, 7*G-1)})")
                e("    s_memrealtime s[22:23]")
            e(f"    s_waitcnt vmcnt({min(63, 7*(G-1-k) + nst)})")
            if a.stamps and k == G - 1: e("    s_memrealtime s[24:25]")
        if a.kind != "read":
            for j in range(7):
                r = xb + 28 * k + 4 * j
                e(f"    global_store_dwordx4 v{vb[k]}, v[{r}:{r+3}], s[8:9] offset:{128*j}{st}")
                nst += 1
    return finish(a, L, grid, waves, max(vb) + 1 if G > 1 else xb + 28 * G + 28 + 8)

if __name__ == "__main__":
    p = argparse.ArgumentParser()
    p.add_argument("--block", type=int, default=256)
    p.add_argument("--groups", type=int, default=1)
    p.add_argument("--ld", default="")
    p.add_argument("--st", default="")
    p.add_argument("--mimic", type=int, default=1)
    p.add_argument("--kind", default="full")
    p.add_argument("--stamps", type=int, default=0)
    p.add_argument("--xmask", type=lambda x:int(x,0), default=0xff)
    p.add_argument("--ncu", type=int, default=32)
    p.add_argument("-o", default="-")
    a = p.parse_args()
    s = gen(a)
    if a.o == "-":
        sys.stdout.write(s)
    else:
        open(a.o, "w").write(s)
```

```python
import sys, argparse
sys.path.insert(0, "gen")
from gen import HEADER, FOOTER
ROWB, GB, W, GRID = 896, 7168, 8, 256

def gen(a):
    L = []; e = L.append
    c = lambda s: e("    ; " + s)
    vCOL, vA0, vA1 = 1, 2, 3
    acc0, acc1, t0, t1, t2, t3, inv = 4, 5, 6, 7, 8, 9, 10
    xb = 12; gb = xb + 56; gl = gb + 28; nv = gb + 56
    vb = [vA0, vA1]
    c("out = x * rsqrt(mean(x^2) + 1e-6) * g, 32768 rows of 448 bf16 (896 B = 7 x 128 B).")
    c("256 workgroups (one per CU) x 8 waves; wave w of workgroup b owns rows 16*(256*w + b) .. +15.")
    c("8 lanes per row, 16 B per lane per load: one load instruction = one 128-B line of 8 rows,")
    c("7 loads = a group of 8 whole rows, 2 groups per wave, all held in registers.")
    c("Schedule: a CU issues every load first, computes in registers, and starts storing only when")
    c(f"{a.gate} of its 112 loads have landed (LDS counter): loads that are still queued when the stores")
    c("flood the memory path are held up for more than a microsecond.")
    e("    s_load_dwordx4 s[4:7], s[0:1], 0           ; x, g")
    e("    s_load_dwordx2 s[8:9], s[0:1], 16          ; out")
    e(f"    s_cmpk_ge_u32 s2, {GRID}")
    e("    s_cbranch_scc1 L_end")
    e(f"    v_lshrrev_b32 v{t1}, 6, v0                  ; wave")
    e(f"    v_bfe_u32 v{t0}, v0, 3, 3")
    e(f"    v_and_b32 v{vCOL}, 7, v0")
    e(f"    v_readfirstlane_b32 s13, v{t1}")
    e(f"    v_mul_u32_u24 v{t0}, {ROWB}, v{t0}")
    e(f"    v_lshlrev_b32 v{vCOL}, 4, v{vCOL}                  ; 16 * (lane & 7)")
    e(f"    s_lshl_b32 s3, s13, 8")
    e(f"    s_add_u32 s3, s3, s2")
    e(f"    s_mulk_i32 s3, {2*GB}")
    e(f"    v_mov_b32 v{t2}, 0")
    e(f"    v_add3_u32 v{vA0}, v{t0}, v{vCOL}, s3")
    e(f"    ds_write_b32 v{t2}, v{t2}")
    def rest():
        e(f"    s_mulk_i32 s13, {ROWB}")
        e(f"    v_and_b32 v{t0}, 63, v0")
        e(f"    s_add_u32 s13, s13, 16")
        e(f"    v_lshlrev_b32 v{t0}, 4, v{t0}                  ; 16 * lane")
        e("    s_mov_b32 m0, s13")
        e(f"    v_add_u32 v{vA1}, {GB}, v{vA0}")
        e("    s_bfm_b64 s[14:15], 56, 0                  ; lanes 0..55")
    if not a.late: rest()
    e("    s_waitcnt lgkmcnt(0)")
    e("    s_barrier")
    def xload(k):
        for j in range(7):
            r = xb + 28 * k + 4 * j
            e(f"    global_load_dwordx4 v[{r}:{r+3}], v{vb[k]}, s[4:5] offset:{128*j} nt")
    c("---- all loads")
    xload(0)
    if a.late: rest()
    e("    s_mov_b64 exec, s[14:15]")
    e(f"    global_load_lds_dwordx4 v{t0}, s[6:7]        ; g (896 B) -> LDS")
    e("    s_mov_b64 exec, -1")
    xload(1)
    e("    s_mov_b32 s10, 0x3b124925                  ; 1/448")
    e("    s_mov_b32 s11, 0x358637bd                  ; 1e-6")
    e("    s_mov_b32 s12, 0xffff0000")
    c("---- count this wave's loads into the workgroup's counter as they land")
    e(f"    v_mov_b32 v{t3}, 4")
    e(f"    v_mov_b32 v{inv}, 3")
    e("    s_mov_b64 exec, 1")
    for n, r in ((11, t3), (8, inv), (3, t3), (0, inv)):
        e(f"    s_waitcnt vmcnt({n})")
        e(f"    ds_add_u32 v{t2}, v{r}")
    e("    s_mov_b64 exec, -1")
    c("---- g: this lane's 56 columns, widened to f32")
    e(f"    v_add_u32 v{t0}, s13, v{vCOL}")
    for j in range(7):
        e(f"    ds_read_b128 v[{gl+4*j}:{gl+4*j+3}], v{t0} offset:{128*j}")
    for i in range(28):
        if i % 4 == 0: e(f"    s_waitcnt lgkmcnt({6 - i // 4})")
        e(f"    v_lshlrev_b32 v{gb+2*i}, 16, v{gl+i}")
        e(f"    v_and_b32 v{gb+2*i+1}, s12, v{gl+i}")
    for k in range(2):
        xr = xb + 28 * k
        c(f"---- group {k}: sum of squares over the row's 8 lanes, then scale in place")
        e(f"    v_mov_b32 v{acc0}, 0")
        e(f"    v_mov_b32 v{acc1}, 0")
        for i in range(28):
            e(f"    v_dot2c_f32_bf16 v{acc0 + (i&1)}, v{xr+i}, v{xr+i}")
        e("    s_nop 2")
        e(f"    v_add_f32 v{acc0}, v{acc0}, v{acc1}")
        e("    s_nop 1")
        e(f"    v_add_f32_dpp v{acc0}, v{acc0}, v{acc0} quad_perm:[1,0,3,2] row_mask:0xf bank_mask:0xf")
        e("    s_nop 1")
        e(f"    v_add_f32_dpp v{acc0}, v{acc0}, v{acc0} quad_perm:[2,3,0,1] row_mask:0xf bank_mask:0xf")
        e("    s_nop 1")
        e(f"    v_add_f32_dpp v{acc0}, v{acc0}, v{acc0} row_half_mirror row_mask:0xf bank_mask:0xf")
        e(f"    v_mov_b32 v{acc1}, s11")
        e(f"    v_fmac_f32 v{acc1}, s10, v{acc0}")
        e(f"    v_rsq_f32 v{inv}, v{acc1}")
        for i in range(28):
            ta, tb_ = (t0, t1) if (i & 1) == 0 else (t2, t3)
            e(f"    v_lshlrev_b32 v{ta}, 16, v{xr+i}")
            e(f"    v_and_b32 v{tb_}, s12, v{xr+i}")
            e(f"    v_pk_mul_f32 v[{ta}:{tb_}], v[{ta}:{tb_}], v[{inv}:{inv+1}] op_sel_hi:[1,0]")
            e(f"    v_pk_mul_f32 v[{ta}:{tb_}], v[{ta}:{tb_}], v[{gb+2*i}:{gb+2*i+1}]")
            e(f"    v_cvt_pk_bf16_f32 v{xr+i}, v{ta}, v{tb_}")
    c("---- hold the stores until most of the workgroup's loads have landed")
    e(f"    v_mov_b32 v{t2}, 0")
    e("L_gate:")
    e(f"    ds_read_b32 v{t3}, v{t2}")
    e("    s_waitcnt lgkmcnt(0)")
    e(f"    v_cmp_gt_u32 vcc, {a.gate}, v{t3}")
    e("    s_cbranch_vccnz L_gate")
    c("---- all stores, write-through (nothing dirty is left for the end of the kernel)")
    for k in range(2):
        for j in range(7):
            r = xb + 28 * k + 4 * j
            nt = " nt" if a.pat[7 * k + j] == "1" else ""
            e(f"    global_store_dwordx4 v{vb[k]}, v[{r}:{r+3}], s[8:9] offset:{128*j} sc0 sc1{nt}")
    e("L_end:")
    e("    s_endpgm")
    return HEADER.format(grid=GRID, block=64 * W, lds=16 + ROWB * W) + "\n".join(L) + "\n" + FOOTER.format(vgpr=nv, sgpr=16, accum=(nv + 3) // 4 * 4)

if __name__ == "__main__":
    p = argparse.ArgumentParser()
    p.add_argument("--gate", type=int, default=92)
    p.add_argument("--pat", default="00000001111111")
    p.add_argument("--late", type=int, default=0)
    p.add_argument("-o", default="-")
    a = p.parse_args()
    (sys.stdout if a.o == "-" else open(a.o, "w")).write(gen(a))
```

```python
import sys, argparse
sys.path.insert(0, "gen")
from gen import HEADER, FOOTER
ROWB, GB, W, GRID = 896, 7168, 8, 256

def gen(a):
    L = []; e = L.append
    c = lambda s: e("    ; " + s)
    vCOL, vA0, vA1 = 1, 2, 3
    acc0, acc1, t0, t1, t2, t3, inv = 4, 5, 6, 7, 8, 9, 10
    xb = 12; gb = xb + 56; gl = gb + 28; nv = gb + 56
    vb = [vA0, vA1]
    c("out = x * rsqrt(mean(x^2) + 1e-6) * g, 32768 rows of 448 bf16 (896 B = 7 x 128 B).")
    c("256 workgroups (one per CU) x 8 waves; wave w of workgroup b owns rows 16*(256*w + b) .. +15.")
    c("8 lanes per row, 16 B per lane per load: one load instruction = one 128-B line of 8 rows,")
    c("7 loads = a group of 8 whole rows, 2 groups per wave, all held in registers.")
    c("Schedule: a CU issues every load first, computes in registers, and starts storing only when")
    c(f"{a.gate} of its 112 loads have landed (LDS counter): loads that are still queued when the stores")
    c("flood the memory path are held up for more than a microsecond.")
    e("    s_load_dwordx4 s[4:7], s[0:1], 0           ; x, g")
    if not a.nb: e("    s_load_dwordx2 s[8:9], s[0:1], 16          ; out")
    e(f"    s_cmpk_ge_u32 s2, {GRID}")
    e("    s_cbranch_scc1 L_end")
    e(f"    v_lshrrev_b32 v{t1}, 6, v0                  ; wave")
    e(f"    v_bfe_u32 v{t0}, v0, 3, 3")
    e(f"    v_and_b32 v{vCOL}, 7, v0")
    e(f"    v_readfirstlane_b32 s13, v{t1}")
    e(f"    v_mul_u32_u24 v{t0}, {ROWB}, v{t0}")
    e(f"    v_lshlrev_b32 v{vCOL}, 4, v{vCOL}                  ; 16 * (lane & 7)")
    e(f"    s_lshl_b32 s3, s13, 8")
    e(f"    s_add_u32 s3, s3, s2")
    e(f"    s_mulk_i32 s3, {2*GB}")
    e(f"    v_mov_b32 v{t2}, 0")
    e(f"    v_add3_u32 v{vA0}, v{t0}, v{vCOL}, s3")
    if a.step:
        e(f"    v_mov_b32 v{t3}, 0")
        e(f"    ds_write_b64 v{t2}, v[{t2}:{t3}]")
    elif not a.nb: e(f"    ds_write_b32 v{t2}, v{t2}")
    def rest():
        e(f"    s_mulk_i32 s13, {ROWB}")
        e(f"    v_and_b32 v{t0}, 63, v0")
        e(f"    s_add_u32 s13, s13, 16")
        e(f"    v_lshlrev_b32 v{t0}, 4, v{t0}                  ; 16 * lane")
        e("    s_mov_b32 m0, s13")
        e(f"    v_add_u32 v{vA1}, {GB}, v{vA0}")
        e("    s_bfm_b64 s[14:15], 56, 0                  ; lanes 0..55")
    if not a.late: rest()
    if a.nb:
        c(f"waves {a.nb}..7 queue behind the first waves anyway: they zero the counter and meet them at the barrier")
        e(f"    v_cmp_gt_u32 vcc, {a.nb}, v{t1}")
        e("    s_cbranch_vccnz L_first")
        e(f"    ds_write_b32 v{t2}, v{t2}")
        e("    s_waitcnt lgkmcnt(0)")
        e("    s_barrier")
        e("L_first:")
        e("    s_waitcnt lgkmcnt(0)")
    else:
        e("    s_waitcnt lgkmcnt(0)")
        e("    s_barrier")
    def xload(k):
        for j in range(7):
            r = xb + 28 * k + 4 * j
            e(f"    global_load_dwordx4 v[{r}:{r+3}], v{vb[k]}, s[4:5] offset:{128*j} nt")
    if a.prio == 2: e("    s_setprio 1")
    c("---- all loads")
    xload(0)
    if a.late: rest()
    e("    s_mov_b64 exec, s[14:15]")
    e(f"    global_load_lds_dwordx4 v{t0}, s[6:7]        ; g (896 B) -> LDS")
    if a.warm:
        e("    s_mov_b64 exec, 1")
        e(f"    global_load_dword v11, v{vA0}, s[8:9] nt")
    e("    s_mov_b64 exec, -1")
    xload(1)
    if a.nb:
        e("    s_load_dwordx2 s[8:9], s[0:1], 16          ; out")
        e("    s_cbranch_vccz L_second")
        e("    s_barrier")
        e("L_second:")
    if a.prio == 1: e("    s_setprio 1")
    e("    s_mov_b32 s10, 0x3b124925                  ; 1/448")
    e("    s_mov_b32 s11, 0x358637bd                  ; 1e-6")
    e("    s_mov_b32 s12, 0xffff0000")
    c("---- count this wave's loads into the workgroup's counter as they land")
    e(f"    v_mov_b32 v{t3}, 4")
    e(f"    v_mov_b32 v{inv}, 3")
    e("    s_mov_b64 exec, 1")
    for n, r in ((11 + a.warm, t3), (8 + a.warm, inv), (3, t3), (0, inv)):
        e(f"    s_waitcnt vmcnt({n})")
        e(f"    ds_add_u32 v{t2}, v{r}")
    e("    s_mov_b64 exec, -1")
    c("---- g: this lane's 56 columns, widened to f32")
    e(f"    v_add_u32 v{t0}, s13, v{vCOL}")
    if a.nb: e("    s_waitcnt lgkmcnt(0)")
    for j in range(7):
        e(f"    ds_read_b128 v[{gl+4*j}:{gl+4*j+3}], v{t0} offset:{128*j}")
    for i in range(28):
        if i % 4 == 0: e(f"    s_waitcnt lgkmcnt({6 - i // 4})")
        e(f"    v_lshlrev_b32 v{gb+2*i}, 16, v{gl+i}")
        e(f"    v_and_b32 v{gb+2*i+1}, s12, v{gl+i}")
    for k in range(2):
        xr = xb + 28 * k
        c(f"---- group {k}: sum of squares over the row's 8 lanes, then scale in place")
        e(f"    v_mov_b32 v{acc0}, 0")
        e(f"    v_mov_b32 v{acc1}, 0")
        for i in range(28):
            e(f"    v_dot2c_f32_bf16 v{acc0 + (i&1)}, v{xr+i}, v{xr+i}")
        e("    s_nop 2")
        e(f"    v_add_f32 v{acc0}, v{acc0}, v{acc1}")
        e("    s_nop 1")
        e(f"    v_add_f32_dpp v{acc0}, v{acc0}, v{acc0} quad_perm:[1,0,3,2] row_mask:0xf bank_mask:0xf")
        e("    s_nop 1")
        e(f"    v_add_f32_dpp v{acc0}, v{acc0}, v{acc0} quad_perm:[2,3,0,1] row_mask:0xf bank_mask:0xf")
        e("    s_nop 1")
        e(f"    v_add_f32_dpp v{acc0}, v{acc0}, v{acc0} row_half_mirror row_mask:0xf bank_mask:0xf")
        e(f"    v_mov_b32 v{acc1}, s11")
        e(f"    v_fmac_f32 v{acc1}, s10, v{acc0}")
        e(f"    v_rsq_f32 v{inv}, v{acc1}")
        for i in range(28):
            ta, tb_ = (t0, t1) if (i & 1) == 0 else (t2, t3)
            e(f"    v_lshlrev_b32 v{ta}, 16, v{xr+i}")
            e(f"    v_and_b32 v{tb_}, s12, v{xr+i}")
            e(f"    v_pk_mul_f32 v[{ta}:{tb_}], v[{ta}:{tb_}], v[{inv}:{inv+1}] op_sel_hi:[1,0]")
            e(f"    v_pk_mul_f32 v[{ta}:{tb_}], v[{ta}:{tb_}], v[{gb+2*i}:{gb+2*i+1}]")
            e(f"    v_cvt_pk_bf16_f32 v{xr+i}, v{ta}, v{tb_}")
    if a.prio: e("    s_setprio 0")
    c("---- hold the stores until most of the workgroup's loads have landed")
    e(f"    v_mov_b32 v{t2}, 0")
    if a.step:
        e(f"    v_mov_b32 v{t1}, 1")
        e("    s_mov_b64 exec, 1")
        e(f"    ds_add_rtn_u32 v{t0}, v{t2}, v{t1} offset:4")
        e("    s_mov_b64 exec, -1")
        e("    s_waitcnt lgkmcnt(0)")
        e(f"    v_readfirstlane_b32 s14, v{t0}")
        e("    s_nop 0")
        e(f"    s_mulk_i32 s14, {a.step}")
        e(f"    s_addk_i32 s14, {a.gate}")
        e(f"    s_min_u32 s14, s14, {a.gmax}")
    e("L_gate:")
    e(f"    ds_read_b32 v{t3}, v{t2}")
    e("    s_waitcnt lgkmcnt(0)")
    e(f"    v_cmp_gt_u32 vcc, {'s14' if a.step else a.gate}, v{t3}")
    e("    s_cbranch_vccnz L_gate")
    c("---- all stores, write-through (nothing dirty is left for the end of the kernel)")
    for k in range(2):
        for j in range(7):
            r = xb + 28 * k + 4 * j
            nt = " nt" if a.pat[7 * k + j] == "1" else ""
            e(f"    global_store_dwordx4 v{vb[k]}, v[{r}:{r+3}], s[8:9] offset:{128*j} sc0 sc1{nt}")
    e("L_end:")
    e("    s_endpgm")
    return HEADER.format(grid=GRID, block=64 * W, lds=16 + ROWB * W) + "\n".join(L) + "\n" + FOOTER.format(vgpr=max(nv, a.minv), sgpr=16, accum=(max(nv, a.minv) + 3) // 4 * 4)

if __name__ == "__main__":
    p = argparse.ArgumentParser()
    p.add_argument("--gate", type=int, default=92)
    p.add_argument("--pat", default="00000001111111")
    p.add_argument("--late", type=int, default=0)
    p.add_argument("--prio", type=int, default=0)
    p.add_argument("--minv", type=int, default=0)
    p.add_argument("--nb", type=int, default=0)
    p.add_argument("--warm", type=int, default=0)
    p.add_argument("--step", type=int, default=0)
    p.add_argument("--gmax", type=int, default=112)
    p.add_argument("-o", default="-")
    a = p.parse_args()
    (sys.stdout if a.o == "-" else open(a.o, "w")).write(gen(a))
```
